```python
import torch

def _softmax(x, axis=-1):
    return torch.softmax(x, dim=axis)
def _gelu(x):
    return torch.nn.functional.gelu(x, approximate="tanh")
def _silu(x):
    return torch.nn.functional.silu(x)
def _sigmoid(x):
    return torch.sigmoid(x)
def _layernorm(x, axis=-1, eps=1e-5):
    m = x.mean(dim=axis, keepdim=True)
    v = x.var(dim=axis, keepdim=True, unbiased=False)
    return (x - m) / torch.sqrt(v + eps)
def _scatter_add(tgt, idx, src, axis=0):
    return tgt.clone().index_add_(axis, idx, src)
def _segment_sum(src, seg, n):
    out = torch.zeros((n,) + src.shape[1:], dtype=src.dtype)
    return out.index_add_(0, seg, src)
def _pad(x, pw):
    flat = tuple(v for pair in reversed(pw) for v in pair)
    return torch.nn.functional.pad(x, flat)

kernel_name = 'standalone__mha_softmax__sampling'

def setup_inputs():

    _w = (lambda a: (lambda t: t.to(torch.bfloat16) if t.is_floating_point() else t)(torch.as_tensor(a)))
    B, H, Sq, Sk, D = 8, 16, 4, 4096, 256
    return {
        "q": _w((lambda *s: torch.randn(*s, dtype=torch.bfloat16) * 0.8)(B, H, Sq, D)),
        "k": _w((lambda *s: torch.randn(*s, dtype=torch.bfloat16) * 0.8)(B, H, Sk, D)),
        "v": _w((lambda *s: torch.randn(*s, dtype=torch.bfloat16) * 0.05)(B, H, Sk, D)),
    }

def reference(q, k, v):
    scale = q.shape[-1] ** -0.5
    scores = torch.einsum("bhqd,bhkd->bhqk", q, k) * scale
    p = _softmax(scores, axis=-1)
    return torch.einsum("bhqk,bhkd->bhqd", p, v)
```

```python
import re
TRANS = ("v_exp_f32","v_log_f32","v_rcp_f32","v_rsq_f32","v_sqrt_f32","v_sin_f32","v_cos_f32")
PASSES = {"v_mfma_f32_4x4x4_16b_bf16":2, "v_mfma_f32_16x16x32_bf16":4, "v_mfma_f32_32x32x16_bf16":8}
IDX = {2:0,4:1,8:2,16:3}
def regs(op):
    op=op.strip().lstrip('-')
    m=re.fullmatch(r'abs\((.*)\)',op)
    if m: op=m.group(1)
    m=re.fullmatch(r'([vas])\[(\d+):(\d+)\]',op)
    if m: return {(m.group(1),i) for i in range(int(m.group(2)),int(m.group(3))+1)}
    m=re.fullmatch(r'([vas])(\d+)',op)
    if m: return {(m.group(1),int(m.group(2)))}
    if op=='vcc': return {('s','vcc')}
    if op=='exec': return {('s','exec')}
    return set()
class I:
    def __init__(s,text):
        s.text=text; s.pad=0
        t=text.split(';')[0].strip()
        s.label = t.endswith(':'); s.w=set(); s.r=set(); s.cls='other'; s.c=set(); s.ab=set(); s.data=set()
        if s.label or not t or t.startswith('.'): s.cls='pseudo'; s.op=''; return
        p=t.split(None,1); s.op=p[0]; rest=p[1] if len(p)>1 else ''
        ops=[o.strip() for o in rest.split(',')]
        if ops: ops[-1]=ops[-1].split()[0] if ops[-1] else ''
        op=s.op
        if op.startswith('v_mfma'):
            s.cls='mfma'; s.passes=PASSES[op]; s.w=regs(ops[0]); s.ab=regs(ops[1])|regs(ops[2]); s.c=regs(ops[3]); s.r=s.ab|s.c
        elif op.startswith('v_permlane'):
            s.cls='valu'; s.perml=True; s.w=regs(ops[0])|regs(ops[1]); s.r=set(s.w)
        elif op.startswith('v_cmp'):
            s.cls='valu'; s.w=regs(ops[0]); s.r=set().union(*[regs(o) for o in ops[1:]])
        elif op.startswith('v_readfirstlane') or op.startswith('v_readlane'):
            s.cls='valu'; s.rdl=True; s.w=regs(ops[0]); s.r=set().union(*[regs(o) for o in ops[1:]])
        elif op.startswith('v_'):
            s.cls='valu'; s.w=regs(ops[0]); s.r=set().union(*[regs(o) for o in ops[1:]]) if len(ops)>1 else set()
            if op.startswith(('v_fmac','v_dot2c','v_pk_fmac')): s.r|=s.w
            if '_dpp' in op: s.dpp=True; s.dppsrc=regs(ops[1]); s.r|=s.w
            if op.startswith('v_cndmask') and len(ops)==3: s.r|={('s','vcc')}
        elif op.startswith(('buffer_load','global_load')):
            s.cls='vmem'
            if ' lds' in t or 'load_lds' in op: s.r=set().union(*[regs(o) for o in ops])
            else: s.w=regs(ops[0]); s.r=set().union(*[regs(o) for o in ops[1:]])
        elif op.startswith(('buffer_store','global_store')):
            s.cls='vmem'; s.r=set().union(*[regs(o) for o in ops])
            if op.endswith(('x3','x4')): s.data = regs(ops[0] if op.startswith('buffer') else ops[1])
        elif op.startswith(('global_atomic','buffer_atomic')):
            s.cls='vmem'
            if 'sc0' in t and op.startswith('global'): s.w=regs(ops[0]); s.r=set().union(*[regs(o) for o in ops[1:]])
            else: s.r=set().union(*[regs(o) for o in ops])
        elif op.startswith('ds_read') or op.startswith('ds_bperm') or op.startswith('ds_swiz'):
            s.cls='ds'; s.w=regs(ops[0]); s.r=set().union(*[regs(o) for o in ops[1:]])
        elif op.startswith('ds_'):
            s.cls='ds'; s.r=set().union(*[regs(o) for o in ops])
        elif op.startswith('s_'):
            s.cls='salu'
            if op=='s_nop': s.n=int(ops[0])+1
    def slots(s):
        if s.cls=='pseudo': return 0
        return getattr(s,'n',1)
def need(p,c):
    n=0
    vw={x for x in p.w if x[0]in'va'}; sw={x for x in p.w if x[0]=='s'}
    if p.cls=='valu':
        if c.cls=='valu':
            if getattr(c,'dpp',0) and vw&c.dppsrc: n=max(n,2)
            if getattr(c,'dpp',0) and vw&c.r: n=max(n,2)
            if getattr(c,'rdl',0) and vw&c.r: n=max(n,1)
            if getattr(c,'perml',0) and vw&c.r: n=max(n,2)
            if p.op.replace('_e32','').replace('_e64','') in TRANS and vw&c.r: n=max(n,1)
            if sw&c.r: n=max(n,4 if getattr(c,'rdl',0) else 2)
        if c.cls=='mfma' and vw&c.r: n=max(n,2)
        if c.cls=='vmem' and sw&c.r: n=max(n,5)
    if p.cls=='mfma':
        k=IDX[p.passes]
        if c.cls=='mfma':
            if p.w&c.c:
                if p.w==c.c and p.passes==c.passes: n=max(n,[2,0,0,0][k])
                else: n=max(n,[4,6,10,18][k])
            if p.w&c.ab: n=max(n,[5,8,12,20][k])
            if p.w&c.w and not (p.w==c.c and p.passes==c.passes): n=max(n,[4,6,10,18][k])
        elif c.cls in('valu','vmem','ds'):
            if p.w&(c.r|c.w): n=max(n,[5,8,12,20][k])
            if c.cls=='valu' and p.c&c.w: n=max(n,[1,3,7,15][k])
    if p.cls=='vmem' and p.data and (p.data&c.w): n=max(n,2)
    return n
class Prog:
    def __init__(s): s.L=[]
    def __call__(s,text):
        for t in text.split('\n'):
            if t.strip(): s.L.append(I(t.strip()))
    def pad(s, paths):
        changed=True
        while changed:
            changed=False
            for path in paths:
                for ci,c in enumerate(path):
                    if c.cls in('pseudo',): continue
                    d=c.pad; j=ci-1
                    while j>=0 and d<24:
                        p=path[j]
                        n=need(p,c)
                        if n>d:
                            c.pad+=n-d; changed=True; d=n
                        d+=p.slots()+p.pad
                        j-=1
    def text(s):
        out=[]
        for i in s.L:
            n=i.pad
            while n>0:
                k=min(n,16); out.append(f"    s_nop {k-1}"); n-=k
            out.append(i.text if (i.label or i.text.startswith('.')) else "    "+i.text)
        return "\n".join(out)+"\n"
    def seg(s,a,b):
        ia=0 if a is None else next(k for k,i in enumerate(s.L) if i.text==a+':')
        ib=len(s.L) if b is None else next(k for k,i in enumerate(s.L) if i.text==b+':')
        return s.L[ia:ib]
```

```python
import sys, math, json
from emit import *
from asmlib import *
NAME="standalone__mha_softmax__sampling_kernel"
C_SCALE = 0x3DB8AA3B
def gen(name=NAME, W=5, ts=False, flags="nt", lds=17408, NT=32):
    P=Prog(); A=P
    vKo, vV0, vV1 = 1,2,3
    vQ=4
    vK=20
    vV=52
    vAcc=84
    vD0,vD1=116,120
    vS=124
    vP=128
    vT=130
    vMc,vL,vAl,vX,vY,vLane=138,139,140,141,142,143
    NV=144
    sK,sV,sCnt,sC,sSelLo,sSelHi,sW,sHead=24,25,26,27,28,29,30,31
    def R(b,n=4): return f"v[{b}:{b+n-1}]"
    A(f".text\n.globl {name}\n.p2align 8\n.type {name},@function\n{name}:")
    if ts: A("s_memrealtime s[40:41]")
    A(f"s_cmp_ge_u32 s2, 256\ns_cbranch_scc1 L_end_{name}")
    A("s_load_dwordx8 s[4:11], s[0:1], 0      ; q k v out")
    A("s_load_dwordx4 s[12:15], s[0:1], 32")
    A(f"v_lshrrev_b32 v{vX}, 6, v0")
    A(f"v_and_b32 v{vLane}, 63, v0")
    A(f"v_readfirstlane_b32 s{sW}, v{vX}")
    A(f"v_bfe_u32 v{vX}, v0, 2, 1\nv_lshlrev_b32 v{vKo}, 12, v{vX}")
    A(f"v_bfe_u32 v{vX}, v0, 1, 1\nv_lshl_add_u32 v{vKo}, v{vX}, 10, v{vKo}")
    A(f"v_bfe_u32 v{vX}, v0, 3, 1\nv_lshl_add_u32 v{vKo}, v{vX}, 9, v{vKo}")
    A(f"v_bfe_u32 v{vY}, v0, 4, 2\nv_lshl_add_u32 v{vKo}, v{vY}, 5, v{vKo}")
    A(f"v_and_b32 v{vX}, 1, v0\nv_lshl_add_u32 v{vKo}, v{vX}, 4, v{vKo}")
    A(f"v_lshlrev_b32 v{vV0}, 4, v{vLane}\nv_add_u32 v{vV1}, 4096, v{vV0}")
    A(f"v_and_b32 v{vX}, 3, v0\nv_lshlrev_b32 v{vAl}, 9, v{vX}\nv_lshl_add_u32 v{vAl}, v{vY}, 5, v{vAl}")
    A(f"v_bfe_u32 v{vX}, v0, 2, 1\nv_lshl_add_u32 v{vAl}, v{vX}, 4, v{vAl}")
    A(f"s_lshr_b32 s{sHead}, s2, 1")
    A(f"s_lshl_b32 s3, s{sHead}, 11\nv_add_u32 v{vAl}, s3, v{vAl}       ; + head*2048")
    A(f"s_lshl_b32 s{sK}, s2, 20\ns_lshl_b32 s3, s{sW}, 13\ns_add_u32 s{sK}, s{sK}, s3\ns_mov_b32 s{sV}, s{sK}")
    A(f"s_mov_b32 s{sC}, {C_SCALE:#x}\ns_mov_b32 s{sSelLo}, 0x05040100\ns_mov_b32 s{sSelHi}, 0x07060302")
    A("s_mov_b32 s18, 0x10000000\ns_mov_b32 s19, 0x20000\ns_mov_b32 s22, 0x10000000\ns_mov_b32 s23, 0x20000")
    A("s_waitcnt lgkmcnt(0)")
    A("s_mov_b32 s16, s6\ns_and_b32 s17, s7, 0xffff\ns_mov_b32 s20, s8\ns_and_b32 s21, s9, 0xffff")
    def load(slot):
        if slot<8:
            t,i=slot>>2,slot&3
            A(f"buffer_load_dwordx4 {R(vK+4*slot)}, v{vKo}, s[16:19], s{sK} offen offset:{t*2048+i*128} {flags}")
            if slot==7: A(f"s_add_u32 s{sK}, s{sK}, 32768")
        else:
            u=slot-8
            A(f"buffer_load_dwordx4 {R(vV+4*u)}, v{vV0 if u<4 else vV1}, s[20:23], s{sV} offen offset:{(u&3)*1024} {flags}")
            if u==7: A(f"s_add_u32 s{sV}, s{sV}, 32768")
    for i in range(4):
        A(f"global_load_dwordx4 {R(vQ+4*i)}, v{vAl}, s[4:5] offset:{i*128}")
    for n in range(W): load(n)
    for i in range(32): A(f"v_mov_b32 v{vAcc+i}, 0")
    A(f"v_mov_b32 v{vMc}, 0xff800000\nv_mov_b32 v{vL}, 0")
    def pvset(x, es):
        u0=4*x; ab=4*x
        def perm(e):
            w=e>>1; sel=sSelHi if e&1 else sSelLo; t=vT+2*(e&3)
            A(f"v_perm_b32 v{t}, v{vV+4*(u0+1)+w}, v{vV+4*u0+w}, s{sel}")
            A(f"v_perm_b32 v{t+1}, v{vV+4*(u0+3)+w}, v{vV+4*(u0+2)+w}, s{sel}")
        def mf(e):
            t=vT+2*(e&3)
            A(f"v_mfma_f32_4x4x4_16b_bf16 {R(vAcc+4*e)}, v[{vP}:{vP+1}], v[{t}:{t+1}], {R(vAcc+4*e)} cbsz:3 abid:{ab}")
        perm(es[0])
        for k,e in enumerate(es):
            if k+1<len(es): perm(es[k+1])
            mf(e)
    def rescale(lo,hi,src):
        for x in range(lo,hi):
            A(f"v_mul_f32_dpp v{vAcc+x}, v{src}, v{vAcc+x} row_newbcast:{x&3} row_mask:0xf bank_mask:0xf")
    def consume(j):
        if j<8:
            t,i=j>>2,j&3; D=vD1 if t else vD0
            A(f"v_mfma_f32_16x16x32_bf16 {R(D)}, {R(vK+4*j)}, {R(vQ+4*i)}, {R(D) if i else '0'}")
        if j==8:
            for k,(D,a) in enumerate([(vD0,0),(vD0,1),(vD1,0),(vD1,1)]):
                A(f"v_add_f32_dpp v{vS+k}, v{D+2*a+1}, v{D+2*a} row_ror:4 row_mask:0xf bank_mask:0xf")
            A(f"v_max3_f32 v{vX}, v{vS}, v{vS+1}, v{vS+2}\nv_max_f32 v{vX}, v{vX}, v{vS+3}")
            A(f"v_mov_b32 v{vY}, v{vX}")
            A(f"v_permlane16_swap_b32 v{vX}, v{vY}")
            A(f"v_max_f32 v{vX}, v{vX}, v{vY}\nv_mul_f32 v{vX}, s{sC}, v{vX}\nv_max_f32 v{vX}, v{vX}, v{vMc}")
            A(f"v_sub_f32 v{vAl}, v{vMc}, v{vX}\nv_mov_b32 v{vMc}, v{vX}\nv_exp_f32 v{vAl}, v{vAl}")
        if j==9:
            for k in range(4): A(f"v_fma_f32 v{vS+k}, v{vS+k}, s{sC}, -v{vMc}")
            for k in range(4): A(f"v_exp_f32 v{vS+k}, v{vS+k}")
            A(f"v_fma_f32 v{vL}, v{vL}, v{vAl}, v{vS}")
            A(f"v_add_f32 v{vX}, v{vS+1}, v{vS+2}\nv_add_f32 v{vL}, v{vL}, v{vS+3}")
            A(f"v_cvt_pk_bf16_f32 v{vP}, v{vS}, v{vS+1}\nv_cvt_pk_bf16_f32 v{vP+1}, v{vS+2}, v{vS+3}")
            A(f"v_add_f32 v{vL}, v{vL}, v{vX}")
        if j==10: rescale(0,16,vAl)
        if j==11: rescale(16,32,vAl)
        if j==12: pvset(0,[0,1,2,3])
        if j==13: pvset(0,[4,5,6,7])
        if j==15: pvset(1,[0,1,2,3,4,5,6,7])
    A(f"s_mov_b32 s{sCnt}, {NT-1}")
    A(f"L_loop_{name}:")
    for j in range(16):
        A(f"s_waitcnt vmcnt({W-1})")
        load((W+j)%16)
        consume(j)
    A(f"s_sub_u32 s{sCnt}, s{sCnt}, 1\ns_cmp_lg_u32 s{sCnt}, 0\ns_cbranch_scc1 L_loop_{name}")
    A(f"L_last_{name}:")
    for j in range(16):
        A(f"s_waitcnt vmcnt({min(W-1,15-j)})")
        if W+j<16: load(W+j)
        consume(j)
    if ts: A("s_memrealtime s[42:43]")
    A(f"v_mov_b32 v{vX}, v{vMc}\nv_mov_b32 v{vY}, v{vMc}")
    A(f"v_permlane32_swap_b32 v{vX}, v{vY}")
    A(f"v_max_f32 v{vX}, v{vX}, v{vY}")
    A(f"v_sub_f32 v{vAl}, v{vMc}, v{vX}\nv_exp_f32 v{vAl}, v{vAl}")
    A(f"v_mov_b32 v{vS}, v{vX}")
    A(f"v_mul_f32 v{vL}, v{vL}, v{vAl}")
    rescale(0,32,vAl)
    A(f"v_mov_b32 v{vY}, v{vL}\nv_permlane16_swap_b32 v{vL}, v{vY}\nv_add_f32 v{vL}, v{vL}, v{vY}")
    A(f"v_mov_b32 v{vY}, v{vL}\nv_permlane32_swap_b32 v{vL}, v{vY}\nv_add_f32 v{vS+1}, v{vL}, v{vY}")
    A(f"v_and_b32 v{vX}, 31, v{vLane}\nv_lshlrev_b32 v{vX}, 5, v{vX}\nv_lshrrev_b32 v{vY}, 5, v{vLane}\nv_lshl_add_u32 v{vX}, v{vY}, 4, v{vX}")
    A(f"s_lshl_b32 s3, s{sW}, 12\nv_add_u32 v{vX}, s3, v{vX}")
    A(f"s_lshl_b32 s3, s{sW}, 3\ns_add_u32 s3, s3, 16384\nv_lshl_add_u32 v{vY}, v{vLane}, 5, s3")
    vO=vK
    for x in range(16): A(f"v_permlane32_swap_b32 v{vAcc+x}, v{vAcc+16+x}")
    for q in range(4):
        for e in range(4): A(f"v_add_f32 v{vO+4*q+e}, v{vAcc+4*e+q}, v{vAcc+16+4*e+q}")
        A(f"ds_write_b128 v{vX}, {R(vO+4*q)} offset:{q*1024}")
    A(f"s_mov_b64 exec, 15\nds_write_b64 v{vY}, v[{vS}:{vS+1}]\ns_mov_b64 exec, -1")
    A("s_waitcnt lgkmcnt(0)\ns_barrier")
    A(f"s_lshl_b32 s3, s{sW}, 10\nv_lshl_add_u32 v{vX}, v{vLane}, 4, s3")
    A(f"s_lshl_b32 s3, s{sW}, 5\ns_add_u32 s3, s3, 16384\nv_mov_b32 v{vY}, s3")
    vML=vV
    A(f"ds_read_b128 {R(vML)}, v{vY}\nds_read_b128 {R(vML+4)}, v{vY} offset:16")
    for w in range(4): A(f"ds_read_b128 {R(vO+4*w)}, v{vX} offset:{w*4096}")
    A("s_waitcnt lgkmcnt(4)")
    vM,vLs=vS,vS+1
    A(f"v_max3_f32 v{vM}, v{vML}, v{vML+2}, v{vML+4}\nv_max_f32 v{vM}, v{vM}, v{vML+6}")
    for w in range(4): A(f"v_sub_f32 v{vML+2*w}, v{vML+2*w}, v{vM}")
    for w in range(4): A(f"v_exp_f32 v{vML+2*w}, v{vML+2*w}")
    A(f"v_mul_f32 v{vLs}, v{vML}, v{vML+1}")
    for w in range(1,4): A(f"v_fma_f32 v{vLs}, v{vML+2*w}, v{vML+2*w+1}, v{vLs}")
    vR=vAcc
    A("s_waitcnt lgkmcnt(0)")
    for e in range(4): A(f"v_mul_f32 v{vR+e}, v{vML}, v{vO+e}")
    for w in range(1,4):
        for e in range(4): A(f"v_fma_f32 v{vR+e}, v{vML+2*w}, v{vO+4*w+e}, v{vR+e}")
    A(f"s_lshl_b32 s3, s2, 13\nv_add_u32 v{vD0}, s3, v{vX}")
    A(f"s_lshl_b32 s32, s{sW}, 3\ns_add_u32 s33, s3, s32\ns_add_u32 s33, s33, 4096\nv_mov_b32 v{vD0+1}, s33")
    A(f"global_store_dwordx4 v{vD0}, {R(vR)}, s[14:15] sc1")
    A(f"s_mov_b64 exec, 1\nglobal_store_dwordx2 v{vD0+1}, v[{vM}:{vM+1}], s[14:15] sc1\ns_mov_b64 exec, -1")
    A(f"v_xor_b32 v{vD0}, 8192, v{vD0}\nv_xor_b32 v{vD0+1}, 8192, v{vD0+1}")
    A(f"v_mov_b32 v{vD1+2}, 16640")
    A("s_waitcnt vmcnt(0)\ns_barrier")
    A(f"s_cmp_lg_u32 s{sW}, 0\ns_cbranch_scc1 L_tk_{name}")
    A(f"s_lshr_b32 s3, s{sHead}, 1\ns_lshl_b32 s3, s3, 2\ns_and_b32 s32, s{sHead}, 1\ns_lshl_b32 s32, s32, 4\ns_lshl_b32 s33, 1, s32")
    A(f"v_mov_b32 v{vD1}, s3\nv_mov_b32 v{vD1+1}, s33")
    A(f"s_mov_b64 exec, 1\nglobal_atomic_add v{vD1+3}, v{vD1}, v{vD1+1}, s[12:13] sc0 sc1")
    A(f"s_waitcnt vmcnt(0)\nv_lshrrev_b32 v{vD1+3}, s32, v{vD1+3}\nv_and_b32 v{vD1+3}, 0xffff, v{vD1+3}")
    A(f"ds_write_b32 v{vD1+2}, v{vD1+3}\ns_mov_b64 exec, -1\ns_waitcnt lgkmcnt(0)")
    A(f"L_tk_{name}:")
    A(f"s_barrier\nds_read_b32 v{vD1+3}, v{vD1+2}\ns_waitcnt lgkmcnt(0)\nv_readfirstlane_b32 s3, v{vD1+3}")
    A(f"s_cmp_eq_u32 s3, 0\ns_cbranch_scc1 L_fin_{name}")
    vO2=vO; vM2=vML
    A(f"global_load_dwordx2 v[{vM2}:{vM2+1}], v{vD0+1}, s[14:15] sc1")
    A(f"global_load_dwordx4 {R(vO2)}, v{vD0}, s[14:15] sc1")
    A(f"s_lshl_b32 s3, s{sHead}, 11\ns_lshl_b32 s32, s{sW}, 9\ns_add_u32 s3, s3, s32\nv_lshl_add_u32 v{vX}, v{vLane}, 3, s3")
    A("s_waitcnt vmcnt(1)")
    A(f"v_max_f32 v{vY}, v{vM}, v{vM2}\nv_sub_f32 v{vM}, v{vM}, v{vY}\nv_sub_f32 v{vM2}, v{vM2}, v{vY}")
    A(f"v_exp_f32 v{vM}, v{vM}\nv_exp_f32 v{vM2}, v{vM2}")
    A(f"v_mul_f32 v{vLs}, v{vLs}, v{vM}\nv_fma_f32 v{vLs}, v{vM2+1}, v{vM2}, v{vLs}\nv_rcp_f32 v{vLs}, v{vLs}")
    A(f"v_mul_f32 v{vM}, v{vM}, v{vLs}\nv_mul_f32 v{vM2}, v{vM2}, v{vLs}")
    for e in range(4): A(f"v_mul_f32 v{vR+e}, v{vR+e}, v{vM}")
    A("s_waitcnt vmcnt(0)")
    for e in range(4): A(f"v_fma_f32 v{vR+e}, v{vO2+e}, v{vM2}, v{vR+e}")
    A(f"v_cvt_pk_bf16_f32 v{vR}, v{vR}, v{vR+1}\nv_cvt_pk_bf16_f32 v{vR+1}, v{vR+2}, v{vR+3}")
    A(f"global_store_dwordx2 v{vX}, v[{vR}:{vR+1}], s[10:11]")
    A(f"L_fin_{name}:")
    if ts:
        A("s_waitcnt vmcnt(0)\ns_memrealtime s[44:45]")
        A("s_getreg_b32 s46, hwreg(HW_REG_HW_ID)\ns_getreg_b32 s47, hwreg(HW_REG_XCC_ID)")
        A(f"s_lshl_b32 s3, s2, 2\ns_add_u32 s3, s3, s{sW}\ns_lshl_b32 s3, s3, 5\ns_add_u32 s3, s3, 0x20000000")
        A("s_waitcnt lgkmcnt(0)")
        A("v_mov_b32 v8, s40\nv_mov_b32 v9, s41\nv_mov_b32 v10, s44\nv_mov_b32 v11, s45\nv_mov_b32 v12, s42\nv_mov_b32 v13, s43\nv_mov_b32 v14, s46\nv_mov_b32 v15, s47")
        A("v_mov_b32 v1, s3\ns_mov_b64 exec, 1")
        A("global_store_dwordx4 v1, v[8:11], s[14:15]\nglobal_store_dwordx4 v1, v[12:15], s[14:15] offset:16")
    A(f"L_end_{name}:\ns_endpgm")
    body=P.seg(f"L_loop_{name}",f"L_last_{name}")
    pre=P.seg(None,f"L_loop_{name}"); post=P.seg(f"L_last_{name}",None)
    tk=P.seg(f"L_last_{name}",f"L_tk_{name}");
    k=next(i for i,x in enumerate(tk) if x.text.startswith("s_cbranch_scc1 L_tk"))
    P.pad([pre+body+body+post, tk[:k+1]+P.seg(f"L_tk_{name}",None)])
    return P.text()+kd(name,NV,NV,56), (name,NV,56,256), lds
HEAD = open('standalone__mha_softmax__sampling.s.ref').read().split('; Override')[0]
def final(path, **kw):
    t,k,lds=gen(**kw)
    s=HEAD+f"; @launch grid=(256,1,1) block=(256,1,1) lds={lds}\n"+'.amdgcn_target "amdgcn-amd-amdhsa--gfx950"\n'+t
    open(path,'w').write(s)
if __name__=="__main__":
    if sys.argv[1]=="final":
        final(sys.argv[2], **json.loads(sys.argv[3] if len(sys.argv)>3 else "{}"))
    else:
        variants=json.load(open(sys.argv[1]))
        text='.amdgcn_target "amdgcn-amd-amdhsa--gfx950"\n'; ks=[]; specs=[]
        for v in variants:
            t,k,lds=gen(**v); text+=t; ks.append(k)
            specs.append(f"{sys.argv[2]}.co@{k[0]}:256:256:{lds}")
        build(sys.argv[2]+".s",text,ks); print(" ".join(specs))
```
